```python
import torch

def _softmax(x, axis=-1):
    return torch.softmax(x, dim=axis)
def _gelu(x):
    return torch.nn.functional.gelu(x, approximate="tanh")
def _silu(x):
    return torch.nn.functional.silu(x)
def _sigmoid(x):
    return torch.sigmoid(x)
def _layernorm(x, axis=-1, eps=1e-5):
    m = x.mean(dim=axis, keepdim=True)
    v = x.var(dim=axis, keepdim=True, unbiased=False)
    return (x - m) / torch.sqrt(v + eps)
def _scatter_add(tgt, idx, src, axis=0):
    return tgt.clone().index_add_(axis, idx, src)
def _segment_sum(src, seg, n):
    out = torch.zeros((n,) + src.shape[1:], dtype=src.dtype)
    return out.index_add_(0, seg, src)
def _pad(x, pw):
    flat = tuple(v for pair in reversed(pw) for v in pair)
    return torch.nn.functional.pad(x, flat)

kernel_name = 'standalone__mha_block__prompt'

def setup_inputs():

    _w = (lambda a: (lambda t: t.to(torch.bfloat16) if t.is_floating_point() else t)(torch.as_tensor(a)))
    B, S, D, H = 1, 2048, 640, 32
    return {
        "x": _w((lambda *s: torch.randn(*s, dtype=torch.bfloat16) * 0.2)(B, S, D)),
        "wqkv": _w((lambda *s: torch.randn(*s, dtype=torch.bfloat16) * 0.2)(D, 3 * D)),
        "wo": _w((lambda *s: torch.randn(*s, dtype=torch.bfloat16) * 0.05)(D, D)),
    }

def reference(x, wqkv, wo):
    B, S, D = x.shape
    H = 32
    Dh = D // H
    qkv = (lambda x, *d: x.permute(*d))((x @ wqkv).reshape(B, S, 3, H, Dh), 2, 0, 3, 1, 4)
    q, k, v = qkv[0], qkv[1], qkv[2]
    scores = torch.einsum("bhqd,bhkd->bhqk", q, k) * (Dh ** -0.5)
    p = _softmax(scores, axis=-1)
    o = torch.einsum("bhqk,bhkd->bhqd", p, v)
    return (lambda x, *d: x.permute(*d))(o, 0, 2, 1, 3).reshape(B, S, D) @ wo
```

```python
from gen import *
GINSTR = False

def f32bits(x):
    import struct
    return struct.unpack('<I', struct.pack('<f', x))[0]

def gen_gemm(e, kind):
    qkv = kind == 'qkv'
    name = 'qkv_kernel' if qkv else 'outp_kernel'
    NW = 8 if qkv else 4
    TT = 2 if qkv else 1
    MT = 128 if qkv else 32
    XB = MT * 128
    WB = 64 * 320
    STAGE = XB + WB
    NSLOT = 4
    DUMP = NSLOT * STAGE
    XP = 2 if qkv else 1
    WP = 3 if qkv else 5
    NP = XP + WP
    WPITCH = 3840 if qkv else 1280
    NWG = 192 if qkv else 256
    LDS = DUMP + 1024
    ACC = 8
    nacc = TT * 20
    FSET = TT * 4 + 20
    FA = ACC + nacc
    FB = FA + FSET
    bX = FB + FSET
    bW = bX + 2 * TT
    cX = bW + 5
    cW = cX + 2 * TT
    aS = cW + 5
    T = (aS + NP + 3) & ~3
    NV = T + 16
    L = 'L' + kind
    t0, t1, t2, t3, t4, t5 = T, T+1, T+2, T+3, T+4, T+5
    e(f".globl {name}\n.p2align 8\n.type {name},@function")
    e.label(name)
    e(f"""
    s_cmp_ge_u32 s2, {NWG}
    s_cbranch_scc1 {L}_end
    {'s_memtime s[40:41]' if GINSTR else ''}
    {'s_memrealtime s[56:57]' if GINSTR else ''}
    s_load_dwordx2 s[4:5], s[0:1], {0 if qkv else 40}
    s_load_dwordx2 s[8:9], s[0:1], {8 if qkv else 16}
    s_load_dwordx2 s[12:13], s[0:1], {40 if qkv else 24}
    v_and_b32 v1, 63, v0
    v_lshrrev_b32 v2, 6, v0
    s_and_b32 s20, s2, 7
    s_lshl_b32 s20, s20, {1 if qkv else 3}
    s_bfe_u32 s21, s2, {hex(0x10003 if qkv else 0x30003)}
    s_add_u32 s16, s20, s21
    s_lshr_b32 s17, s2, {4 if qkv else 6}
    v_readfirstlane_b32 s18, v2
    s_mov_b32 s6, {S_LEN*1280 if qkv else WS_USED}
    s_mov_b32 s7, 0x00020000
    s_mov_b32 s10, {640*WPITCH}
    s_mov_b32 s11, 0x00020000
    s_mov_b32 s14, {WS_USED if qkv else S_LEN*1280}
    s_mov_b32 s15, 0x00020000
    s_and_b32 s19, s18, {3 if qkv else 1}
    s_lshr_b32 s24, s18, {2 if qkv else 1}
    v_lshrrev_b32 v2, 4, v1              ; g4
    v_and_b32 v3, 15, v1                 ; l&15
    v_and_b32 v4, 7, v1
    v_lshrrev_b32 v5, 3, v1              ; l>>3
    """)
    for i in range(XP):
        e(f"""
        s_add_u32 s20, s18, {NW*i}
        s_lshl_b32 s20, s20, 3
        v_add_u32 v{t0}, s20, v5
        v_bfe_u32 v{t1}, v{t0}, 1, 3
        v_xor_b32 v{t1}, v{t1}, v4
        v_mul_u32_u24 v{t0}, 1280, v{t0}
        v_lshl_add_u32 v{aS+i}, v{t1}, 4, v{t0}
        """)
    for i in range(WP):
        e(f"""
        s_add_u32 s20, s18, {NW*i}
        s_lshl_b32 s20, s20, 10
        v_lshl_add_u32 v{t0}, v1, 4, s20
        v_mul_u32_u24 v{t1}, 52429, v{t0}
        v_lshrrev_b32 v{t1}, 24, v{t1}
        v_mul_u32_u24 v{t2}, 320, v{t1}
        v_sub_u32 v{t2}, v{t0}, v{t2}
        v_lshrrev_b32 v{t2}, 4, v{t2}
        v_bfe_u32 v{t3}, v{t1}, 3, 1
        v_lshlrev_b32 v{t3}, 1, v{t3}
        v_xor_b32 v{t2}, v{t2}, v{t3}
        v_mul_u32_u24 v{t1}, {WPITCH}, v{t1}
        v_lshl_add_u32 v{aS+XP+i}, v{t2}, 4, v{t1}
        """)
    if qkv:
        e(f"""
        s_cmp_ge_u32 s18, 4
        s_cselect_b32 s25, 0, -1
        s_cselect_b32 s26, {DUMP}, 0
        s_cselect_b32 s20, 0x80000000, 0
        v_or_b32 v{aS+NP-1}, s20, v{aS+NP-1}
        """)
    e(f"""
    s_mul_i32 s21, s16, {MT*1280}
    {'' if qkv else f's_add_u32 s21, s21, {OB_OFF}'}
    s_mul_i32 s22, s17, 320
    s_lshl_b32 s27, s18, 10              ; wave*1024
    s_waitcnt lgkmcnt(0)
    """)
    def issue_dma(slot_sgpr, kx, kw):
        for i in range(XP):
            e(f"""
            s_add_u32 s20, {slot_sgpr}, s27
            s_add_u32 m0, s20, {NW*i*1024}
            buffer_load_dwordx4 v{aS+i}, s[4:7], {kx} offen lds
            """)
        for i in range(WP):
            if qkv and i == WP - 1:
                e(f"""
                s_add_u32 s20, {slot_sgpr}, s27
                s_add_u32 s20, s20, {XB+NW*i*1024}
                s_and_b32 s20, s20, s25
                s_add_u32 m0, s20, s26
                buffer_load_dwordx4 v{aS+XP+i}, s[8:11], {kw} offen lds
                """)
            else:
                e(f"""
                s_add_u32 s20, {slot_sgpr}, s27
                s_add_u32 m0, s20, {XB+NW*i*1024}
                buffer_load_dwordx4 v{aS+XP+i}, s[8:11], {kw} offen lds
                """)
    e("s_mov_b32 s28, 0")
    for st in range(3):
        issue_dma('s28', 's21', 's22')
        e(f"""
        s_add_u32 s28, s28, {STAGE}
        s_add_u32 s21, s21, 128
        s_add_u32 s22, s22, {64*WPITCH}
        """)
    for tt in range(TT):
        e(f"""
        s_mul_i32 s20, s19, {TT*16}
        v_add_u32 v{t0}, s20, v3
        v_add_u32 v{t0}, {16*tt}, v{t0}
        v_bfe_u32 v{t1}, v{t0}, 1, 3
        v_lshlrev_b32 v{t0}, 7, v{t0}
        v_xor_b32 v{t2}, v{t1}, v2
        v_lshl_add_u32 v{bX+2*tt}, v{t2}, 4, v{t0}
        v_xor_b32 v{t1}, 4, v{t1}
        v_xor_b32 v{t2}, v{t1}, v2
        v_lshl_add_u32 v{bX+2*tt+1}, v{t2}, 4, v{t0}
        """)
    e(f"""
    v_lshlrev_b32 v{t4}, 3, v2
    v_bfe_u32 v{t3}, v1, 2, 2
    v_add_u32 v{t4}, v{t4}, v{t3}
    v_mul_u32_u24 v{t4}, 320, v{t4}           ; krow*320
    v_and_b32 v{t5}, 1, v2
    v_lshlrev_b32 v{t5}, 1, v{t5}             ; 2*(g4&1)
    v_and_b32 v{t3}, 3, v1
    v_lshlrev_b32 v{t3}, 2, v{t3}             ; 4*(i&3)
    s_mul_i32 s20, s24, 80
    v_add_u32 v{t3}, s20, v{t3}
    v_add_u32 v{t4}, {XB}, v{t4}
    """)
    for ct in range(5):
        e(f"""
        v_add_u32 v{t0}, {16*ct}, v{t3}
        v_lshrrev_b32 v{t1}, 3, v{t0}
        v_xor_b32 v{t1}, v{t1}, v{t5}
        v_and_b32 v{t0}, 7, v{t0}
        v_lshl_add_u32 v{t0}, v{t0}, 1, v{t4}
        v_lshl_add_u32 v{bW+ct}, v{t1}, 4, v{t0}
        """)
    for i in range(nacc):
        e(f"v_mov_b32 v{ACC+i}, 0")
    def reads(F, s2, slot_sgpr):
        for tt in range(TT):
            e(f"v_add_u32 v{cX+tt}, {slot_sgpr}, v{bX+2*tt+s2}")
        for ct in range(5):
            e(f"v_add_u32 v{cW+ct}, {slot_sgpr}, v{bW+ct}")
        for tt in range(TT):
            e(f"ds_read_b128 {vr(F+4*tt,4)}, v{cX+tt}")
        for ct in range(5):
            for hh in range(2):
                e(f"ds_read_b64_tr_b16 {vr(F+4*TT+4*ct+2*hh,2)}, v{cW+ct} offset:{(32*s2+4*hh)*320}")
    def mfmas(F, swap):
        for tt in range(TT):
            for ct in range(5):
                xa, wa = vr(F+4*tt,4), vr(F+4*TT+4*ct,4)
                acc = vr(ACC+(tt*5+ct)*4,4)
                if swap: e(f"v_mfma_f32_16x16x32_bf16 {acc}, {xa}, {wa}, {acc}")
                else: e(f"v_mfma_f32_16x16x32_bf16 {acc}, {wa}, {xa}, {acc}")
    def stage_body(swap, wait, dma, nextreads):
        if wait is not None:
            e(f"s_waitcnt vmcnt({wait})\ns_barrier")
        if dma:
            issue_dma('s28', 's21', 's22')
        reads(FB, 1, 's29')
        e(f"s_waitcnt lgkmcnt({TT+10})")
        mfmas(FA, swap)
        if nextreads:
            reads(FA, 0, 's30')
            e(f"s_waitcnt lgkmcnt({TT+10})")
        else:
            e("s_waitcnt lgkmcnt(0)")
        mfmas(FB, swap)
    def advance():
        e(f"""
        s_mov_b32 s29, s30
        s_add_u32 s30, s30, {STAGE}
        s_cmp_eq_u32 s30, {NSLOT*STAGE}
        s_cselect_b32 s30, 0, s30
        s_add_u32 s28, s28, {STAGE}
        s_cmp_eq_u32 s28, {NSLOT*STAGE}
        s_cselect_b32 s28, 0, s28
        s_add_u32 s21, s21, 128
        s_add_u32 s22, s22, {64*WPITCH}
        """)
    def mainloop(swap, tag):
        e(f"""
        s_mov_b32 s29, 0
        s_mov_b32 s30, {STAGE}
        s_mov_b32 s28, {3*STAGE}
        s_mov_b32 s31, 0
        s_waitcnt vmcnt({2*NP})
        s_barrier
        """)
        if GINSTR: e("s_memtime s[42:43]")
        reads(FA, 0, 's29')
        e.label(f"{L}_loop{tag}")
        stage_body(swap, NP, True, True)
        advance()
        e(f"""
        s_add_u32 s31, s31, 1
        s_cmp_lt_u32 s31, 7
        s_cbranch_scc1 {L}_loop{tag}
        """)
        if GINSTR: e("s_memtime s[44:45]")
        stage_body(swap, NP, False, True); advance()
        stage_body(swap, 0, False, True); advance()
        stage_body(swap, None, False, False)
        if GINSTR: e("s_memtime s[46:47]")
    cvt = lambda d, a, b: e(f"v_cvt_pk_bf16_f32 v{d}, v{a}, v{b}")
    if qkv:
        e(f"s_cmp_ge_u32 s17, 8\ns_cbranch_scc1 {L}_vtype")
        mainloop(False, 'a')
        e("s_nop 15\ns_nop 7")
        e(f"s_cmp_ge_u32 s17, 4\ns_cbranch_scc1 {L}_noscale")
        e(f"s_mov_b32 s20, {hex(f32bits(C_SCALE))}")
        for i in range(nacc):
            e(f"v_mul_f32 v{ACC+i}, s20, v{ACC+i}")
        e.label(f"{L}_noscale")
        e(f"""
        s_lshr_b32 s20, s17, 2
        s_mul_i32 s20, s20, {KF_OFF}
        s_and_b32 s21, s17, 3
        s_lshl_b32 s21, s21, 3
        s_lshl_b32 s22, s24, 2
        s_add_u32 s21, s21, s22
        s_mul_i32 s21, s21, {QK_HEAD}
        s_add_u32 s20, s20, s21
        s_lshl_b32 s21, s16, 2
        s_add_u32 s21, s21, s19
        s_mul_i32 s21, s21, {QK_TILE}
        s_add_u32 s20, s20, s21
        v_mov_b32 v{T+8}, 256
        v_mov_b32 v{T+9}, 128
        v_lshlrev_b32 v{T+10}, 4, v3           ; tau*16
        v_lshlrev_b32 v{T+11}, 3, v3
        v_add_u32 v{T+11}, 1024, v{T+11}       ; 1024+tau*8
        """)
        for ct in range(5):
            e(f"""
            v_add_u32 v{t0}, {4*ct}, v2            ; lq
            v_mul_u32_u24 v{t1}, 52, v{t0}
            v_lshrrev_b32 v{t1}, 8, v{t1}          ; hl
            v_mul_u32_u24 v{t2}, 5, v{t1}
            v_sub_u32 v{t2}, v{t0}, v{t2}          ; dq
            v_lshrrev_b32 v{t3}, 1, v{t2}
            v_lshl_add_u32 v{t3}, v{t3}, 9, v{T+10}
            v_and_b32 v{t4}, 1, v{t2}
            v_lshl_add_u32 v{t3}, v{t4}, 3, v{t3}
            v_cmp_eq_u32 vcc, 4, v{t2}
            v_mul_u32_u24 v{t1}, {QK_HEAD}, v{t1}
            s_nop 1
            v_cndmask_b32 v{t3}, v{t3}, v{T+11}, vcc
            v_add_u32 v{t3}, v{t3}, v{t1}
            v_cndmask_b32 v{t4}, v{T+8}, v{T+9}, vcc
            v_add_u32 v{t4}, v{t4}, v{t3}
            """)
            for tt in range(TT):
                a = ACC + (tt*5+ct)*4
                cvt(T+6, a, a+1); cvt(T+7, a+2, a+3)
                e(f"buffer_store_dwordx2 {vr(T+6,2)}, v{t3 if tt==0 else t4}, s[12:15], s20 offen")
                e("s_nop 1")
        e(f"s_branch {L}_fin")
        e.label(f"{L}_vtype")
        mainloop(True, 'b')
        e("s_nop 15\ns_nop 7")
        e(f"""
        s_and_b32 s21, s17, 3
        s_lshl_b32 s21, s21, 3
        s_lshl_b32 s22, s24, 2
        s_add_u32 s21, s21, s22
        s_mul_i32 s21, s21, {V_HEAD}
        s_add_u32 s20, s21, {VF_OFF}
        s_lshl_b32 s21, s16, 2
        s_add_u32 s21, s21, s19
        s_mul_i32 s21, s21, {V_TILE}
        s_add_u32 s20, s20, s21
        v_bfe_u32 v{T+8}, v1, 4, 1
        v_mul_u32_u24 v{T+8}, 336, v{T+8}
        v_bfe_u32 v{T+9}, v1, 5, 1
        v_lshl_add_u32 v{T+8}, v{T+9}, 3, v{T+8}  ; g*336 + half8*8
        """)
        for ct in range(5):
            e(f"""
            v_add_u32 v{t0}, {16*ct}, v3
            v_mul_u32_u24 v{t1}, 205, v{t0}
            v_lshrrev_b32 v{t1}, 12, v{t1}
            v_mul_u32_u24 v{t2}, 20, v{t1}
            v_sub_u32 v{t2}, v{t0}, v{t2}
            v_lshl_add_u32 v{t2}, v{t2}, 4, v{T+8}
            v_mul_u32_u24 v{t1}, {V_HEAD}, v{t1}
            v_add_u32 v{t2}, v{t2}, v{t1}
            """)
            for tt in range(TT):
                a = ACC + (tt*5+ct)*4
                cvt(T+6, a, a+1); cvt(T+7, a+2, a+3)
                e(f"buffer_store_dwordx2 {vr(T+6,2)}, v{t2}, s[12:15], s20 offen offset:{tt*672}")
                e("s_nop 1")
        e(f"""
        v_lshrrev_b32 v{t0}, 2, v1
        v_mul_u32_u24 v{t0}, {V_HEAD}, v{t0}
        v_bfe_u32 v{t1}, v1, 1, 1
        v_mul_u32_u24 v{t1}, 672, v{t1}
        v_and_b32 v{t2}, 1, v1
        v_mul_u32_u24 v{t2}, 336, v{t2}
        v_add3_u32 v{t0}, v{t0}, v{t1}, v{t2}
        v_add_u32 v{t0}, 320, v{t0}
        v_mov_b32 v{t1}, 0x80000000
        v_cmp_gt_u32 vcc, 16, v1
        s_nop 1
        v_cndmask_b32 v{t0}, v{t1}, v{t0}, vcc
        v_mov_b32 v{T+8}, 0x3f803f80
        v_mov_b32 v{T+9}, 0x3f803f80
        v_mov_b32 v{T+10}, 0x3f803f80
        v_mov_b32 v{T+11}, 0x3f803f80
        s_nop 1
        buffer_store_dwordx4 {vr(T+8,4)}, v{t0}, s[12:15], s20 offen
        """)
    else:
        mainloop(False, 'a')
        e("s_nop 15\ns_nop 7")
        e(f"""
        s_mul_i32 s20, s16, {MT*1280}
        s_mul_i32 s21, s19, {16*1280}
        s_add_u32 s20, s20, s21
        s_mul_i32 s21, s17, 320
        s_add_u32 s20, s20, s21
        s_mul_i32 s21, s24, 160
        s_add_u32 s20, s20, s21
        v_mul_u32_u24 v{t0}, 1280, v3
        v_lshl_add_u32 v{t0}, v2, 3, v{t0}
        """)
        for ct in range(5):
            a = ACC + ct*4
            cvt(T+6, a, a+1); cvt(T+7, a+2, a+3)
            e(f"buffer_store_dwordx2 {vr(T+6,2)}, v{t0}, s[12:15], s20 offen offset:{32*ct}")
            e("s_nop 1")
    e.label(f"{L}_fin")
    if GINSTR:
        e(f'''
        s_waitcnt vmcnt(0)
        s_memtime s[48:49]
        s_memrealtime s[50:51]
        s_load_dwordx2 s[52:53], s[0:1], 32
        s_waitcnt lgkmcnt(0)
        s_mov_b32 s54, 256
        s_mov_b32 s55, 0x00020000
        s_sub_u32 s42, s42, s40
        s_sub_u32 s44, s44, s40
        s_sub_u32 s46, s46, s40
        s_sub_u32 s48, s48, s40
        s_sub_u32 s50, s50, s56
        v_mov_b32 v2, s42
        v_mov_b32 v3, s44
        v_mov_b32 v4, s46
        v_mov_b32 v5, s48
        v_mov_b32 v1, s50
        s_cmp_lg_u32 s2, 37
        s_cbranch_scc1 {L}_end
        s_lshl_b32 s20, s18, 5
        v_mov_b32 v6, s20
        buffer_store_dwordx4 v[2:5], v6, s[52:55], 0 offen
        buffer_store_dword v1, v6, s[52:55], 0 offen offset:16
        ''')
    e.label(f"{L}_end")
    e("s_endpgm")
    return name, NV, NW*64, NWG, LDS
```

```python
import sys, math

S_LEN, D_MODEL, NH, DH = 2048, 640, 32, 20
QK_TILE = 1280
V_TILE = 1344
QK_HEAD = 64 * QK_TILE
V_HEAD = 64 * V_TILE
QF_OFF = 0
KF_OFF = NH * QK_HEAD
VF_OFF = 2 * NH * QK_HEAD
OB_OFF = VF_OFF + NH * V_HEAD
WS_USED = OB_OFF + S_LEN * D_MODEL * 2
C_SCALE = (DH ** -0.5) * math.log2(math.e)

class E:
    def __init__(self):
        self.lines = []
    def __call__(self, s):
        for l in s.strip('\n').split('\n'):
            self.lines.append('    ' + l.strip() if not l.strip().endswith(':') else l.strip())
    def label(self, l):
        self.lines.append(l + ':')
    def text(self):
        return '\n'.join(self.lines) + '\n'

def vr(a, n):
    return f"v[{a}:{a+n-1}]"

ATT_LDS_M = 81920
ATT_LDS_F = 81920 + 4096
ATT_LDS_O = 81920 + 4096 + 256
ATT_LDS = ATT_LDS_O + 24576

INSTR = False
def stamp(e, idx):
    if INSTR:
        e(f's_memtime s[{40+2*idx}:{41+2*idx}]')

def gen_attn(e):
    Q0a, Q1a, Q0b, Q1b = 8, 12, 16, 20
    KA0, KA1, KB0, KB1 = 24, 28, 32, 36
    VA0, VA1, VB0, VB1 = 40, 44, 48, 52
    Sa, Sb = 64, 80
    Pa, Pb = 96, 104
    Oa, Ob = 112, 128
    vK0, vK1, vV, vT0, vT1, vT2, vT3, vMa, vMb, vLane, vG = 144, 145, 146, 147, 148, 149, 150, 151, 152, 153, 154
    X0 = 156
    name = 'attn_kernel'
    e(f".globl {name}\n.p2align 8\n.type {name},@function")
    e.label(name)
    e(f"""
    s_cmp_ge_u32 s2, 256
    s_cbranch_scc1 Lattn_end
    STAMP0
    s_load_dwordx2 s[4:5], s[0:1], 40
    v_and_b32 v{vLane}, 63, v0
    v_lshrrev_b32 v1, 6, v0
    s_and_b32 s20, s2, 7
    s_lshr_b32 s21, s2, 3
    s_and_b32 s22, s21, 3
    s_lshl_b32 s20, s20, 2
    s_add_u32 s8, s20, s22
    s_lshr_b32 s9, s21, 2
    v_readfirstlane_b32 s10, v1
    s_waitcnt lgkmcnt(0)
    s_mov_b32 s6, {WS_USED}
    s_mov_b32 s7, 0x00020000
    s_and_b32 s11, s10, 3             ; qs
    s_lshr_b32 s12, s10, 2            ; kh
    s_cmp_eq_u32 s12, 0
    s_cbranch_scc1 Lattn_noprio
    s_setprio 1
Lattn_noprio:
    v_lshrrev_b32 v{vG}, 5, v{vLane}  ; g = lane>>5
    """)
    e(f"""
    s_mul_i32 s20, s8, {QK_HEAD}
    s_lshl_b32 s21, s9, 3
    s_lshl_b32 s22, s11, 1
    s_add_u32 s21, s21, s22
    s_mul_i32 s21, s21, {QK_TILE}
    s_add_u32 s20, s20, s21
    s_add_u32 s20, s20, {QF_OFF}
    v_lshlrev_b32 v{vT0}, 4, v{vLane}            ; lane*16
    v_and_b32 v{vT1}, 31, v{vLane}
    v_lshlrev_b32 v{vT1}, 3, v{vT1}
    v_add_u32 v{vT1}, 1024, v{vT1}               ; 1024 + (lane&31)*8
    v_mov_b32 v{vT2}, 0x80000000
    v_cmp_gt_u32 vcc, 32, v{vLane}
    s_nop 1
    v_cndmask_b32 v{vT2}, v{vT2}, v{vT1}, vcc
    buffer_load_dwordx4 {vr(Q0a,4)}, v{vT0}, s[4:7], s20 offen
    buffer_load_dwordx2 {vr(Q1a,2)}, v{vT2}, s[4:7], s20 offen
    buffer_load_dwordx4 {vr(Q0b,4)}, v{vT0}, s[4:7], s20 offen offset:{QK_TILE}
    buffer_load_dwordx2 {vr(Q1b,2)}, v{vT2}, s[4:7], s20 offen offset:{QK_TILE}
    """)
    e(f"""
    s_mul_i32 s20, s12, 40960
    s_lshl_b32 s21, s11, 10
    s_add_u32 s14, s20, s21
    s_mul_i32 s13, s8, {QK_HEAD}
    s_add_u32 s13, s13, {KF_OFF}
    s_add_u32 s13, s13, s14
    """)
    for r in range(10):
        e(f"""
        s_mov_b32 m0, s14
        s_add_u32 s14, s14, 4096
        buffer_load_dwordx4 v{vT0}, s[4:7], s13 offen lds
        s_add_u32 s13, s13, 4096
        """)
    e(f"""
    v_mov_b32 v{Q1a+2}, 0
    v_mov_b32 v{Q1a+3}, 0
    v_mov_b32 v{Q1b+2}, 0
    v_mov_b32 v{Q1b+3}, 0
    v_mov_b32 v{KA1+2}, 0x3f803f80
    v_mov_b32 v{KA1+3}, 0
    v_mov_b32 v{KB1+2}, 0x3f803f80
    v_mov_b32 v{KB1+3}, 0
    s_mul_i32 s20, s12, 40960
    v_lshl_add_u32 v{vK0}, v{vLane}, 4, s20
    v_and_b32 v{vT1}, 31, v{vLane}
    v_lshl_add_u32 v{vK1}, v{vT1}, 3, s20
    v_add_u32 v{vK1}, 1024, v{vK1}
    v_min_u32 v{vT1}, 20, v{vT1}
    v_lshlrev_b32 v{vT1}, 4, v{vT1}
    v_mul_u32_u24 v{vT2}, 336, v{vG}
    v_add_u32 v{vV}, v{vT1}, v{vT2}                  ; g*336 + min(d,20)*16
    s_mul_i32 s17, s8, {V_HEAD}
    s_mul_i32 s20, s12, {32*V_TILE}
    s_add_u32 s17, s17, s20
    s_add_u32 s17, s17, {VF_OFF}
    s_mov_b32 s16, 1
    s_waitcnt vmcnt(6)
    s_barrier
    """)
    stamp(e, 1)
    e.label('Lattn_pass1')
    e(f"""
    v_mov_b32 v{vMa}, 0xff800000
    v_mov_b32 v{vMb}, 0xff800000
    v_mov_b32 v{vT0}, v{vK0}
    v_mov_b32 v{vT1}, v{vK1}
    v_mov_b32 v{Q1a+2}, 0
    v_mov_b32 v{Q1b+2}, 0
    s_mov_b32 s15, 0
    """)
    e.label('Lattn_p1loop')
    e(f"""
    ds_read_b128 {vr(KA0,4)}, v{vT0}
    ds_read_b64 {vr(KA1,2)}, v{vT1}
    v_add_u32 v{vT0}, {QK_TILE}, v{vT0}
    v_add_u32 v{vT1}, {QK_TILE}, v{vT1}
    s_waitcnt lgkmcnt(0)
    v_mfma_f32_32x32x16_bf16 {vr(Sa,16)}, {vr(KA0,4)}, {vr(Q0a,4)}, 0
    v_mfma_f32_32x32x16_bf16 {vr(Sa,16)}, {vr(KA1,4)}, {vr(Q1a,4)}, {vr(Sa,16)}
    v_mfma_f32_32x32x16_bf16 {vr(Sb,16)}, {vr(KA0,4)}, {vr(Q0b,4)}, 0
    v_mfma_f32_32x32x16_bf16 {vr(Sb,16)}, {vr(KA1,4)}, {vr(Q1b,4)}, {vr(Sb,16)}
    s_nop 15
    """)
    for i in range(8):
        e(f"v_max3_f32 v{vMa}, v{Sa+2*i}, v{Sa+2*i+1}, v{vMa}")
    for i in range(8):
        e(f"v_max3_f32 v{vMb}, v{Sb+2*i}, v{Sb+2*i+1}, v{vMb}")
    e(f"""
    s_add_u32 s15, s15, 1
    s_cmp_lt_u32 s15, s16
    s_cbranch_scc1 Lattn_p1loop
    """)
    e(f"""
    s_lshl_b32 s20, s10, 9
    s_add_u32 s20, s20, {ATT_LDS_M}
    v_lshl_add_u32 v{vT0}, v{vLane}, 2, s20
    ds_write_b32 v{vT0}, v{vMa}
    ds_write_b32 v{vT0}, v{vMb} offset:256
    s_waitcnt lgkmcnt(0)
    s_barrier
    s_lshl_b32 s20, s11, 9
    s_add_u32 s20, s20, {ATT_LDS_M}
    v_and_b32 v{vT0}, 31, v{vLane}
    v_lshl_add_u32 v{vT0}, v{vT0}, 2, s20
    ds_read_b32 v{X0}, v{vT0}
    ds_read_b32 v{X0+1}, v{vT0} offset:128
    ds_read_b32 v{X0+2}, v{vT0} offset:2048
    ds_read_b32 v{X0+3}, v{vT0} offset:{2048+128}
    ds_read_b32 v{X0+4}, v{vT0} offset:256
    ds_read_b32 v{X0+5}, v{vT0} offset:{256+128}
    ds_read_b32 v{X0+6}, v{vT0} offset:{2048+256}
    ds_read_b32 v{X0+7}, v{vT0} offset:{2048+256+128}
    s_waitcnt lgkmcnt(0)
    v_max3_f32 v{vMa}, v{X0}, v{X0+1}, v{X0+2}
    v_max3_f32 v{vMb}, v{X0+4}, v{X0+5}, v{X0+6}
    v_max_f32 v{vMa}, v{vMa}, v{X0+3}
    v_max_f32 v{vMb}, v{vMb}, v{X0+7}
    """)
    for (M, Q1) in ((vMa, Q1a), (vMb, Q1b)):
        e(f"""
        v_cvt_pk_bf16_f32 v{vT0}, v{M}, v{M}
        v_lshlrev_b32 v{vT0}, 16, v{vT0}
        v_sub_f32 v{vT1}, v{M}, v{vT0}
        v_cvt_pk_bf16_f32 v{vT0}, v{vT0}, v{vT1}
        v_xor_b32 v{vT0}, 0x80008000, v{vT0}
        v_cmp_gt_u32 vcc, 32, v{vLane}
        s_nop 1
        v_cndmask_b32 v{Q1+2}, 0, v{vT0}, vcc
        """)
    e(f"""
    v_mov_b32 v{vT0}, v{vK0}
    v_mov_b32 v{vT1}, v{vK1}
    s_mov_b32 s18, s17
    s_mov_b32 s15, 0
    """)
    for i in range(16):
        e(f"v_mov_b32 v{Oa+i}, 0")
        e(f"v_mov_b32 v{Ob+i}, 0")
    S2a, S2b = 172, 188
    SB = [(Sa, Sb), (S2a, S2b)]
    KB_ = [(KA0, KA1), (KB0, KB1)]
    VB_ = [(VA0, VA1), (VB0, VB1)]
    def s_mfmas(Sx, Kf, Q0, Q1):
        return [f"v_mfma_f32_32x32x16_bf16 {vr(Sx,16)}, {vr(Kf[0],4)}, {vr(Q0,4)}, 0",
                f"v_mfma_f32_32x32x16_bf16 {vr(Sx,16)}, {vr(Kf[1],4)}, {vr(Q1,4)}, {vr(Sx,16)}"]
    def pv_mfmas(O, Vf, P):
        return [f"v_mfma_f32_32x32x16_bf16 {vr(O,16)}, {vr(Vf[0],4)}, {vr(P,4)}, {vr(O,16)}",
                f"v_mfma_f32_32x32x16_bf16 {vr(O,16)}, {vr(Vf[1],4)}, {vr(P+4,4)}, {vr(O,16)}"]
    e(f"""
    ds_read_b128 {vr(KA0,4)}, v{vT0}
    ds_read_b64 {vr(KA1,2)}, v{vT1}
    ds_read_b128 {vr(KB0,4)}, v{vT0} offset:{QK_TILE}
    ds_read_b64 {vr(KB1,2)}, v{vT1} offset:{QK_TILE}
    buffer_load_dwordx4 {vr(VA0,4)}, v{vV}, s[4:7], s18 offen
    buffer_load_dwordx4 {vr(VA1,4)}, v{vV}, s[4:7], s18 offen offset:672
    v_mov_b32 v{Pb}, 0
    v_mov_b32 v{Pb+1}, 0
    v_mov_b32 v{Pb+2}, 0
    v_mov_b32 v{Pb+3}, 0
    v_mov_b32 v{Pb+4}, 0
    v_mov_b32 v{Pb+5}, 0
    v_mov_b32 v{Pb+6}, 0
    v_mov_b32 v{Pb+7}, 0
    v_mov_b32 v{VB0}, 0
    v_mov_b32 v{VB0+1}, 0
    v_mov_b32 v{VB0+2}, 0
    v_mov_b32 v{VB0+3}, 0
    v_mov_b32 v{VB1}, 0
    v_mov_b32 v{VB1+1}, 0
    v_mov_b32 v{VB1+2}, 0
    v_mov_b32 v{VB1+3}, 0
    s_waitcnt lgkmcnt(2)
    """)
    for l in s_mfmas(Sa, KB_[0], Q0a, Q1a) + s_mfmas(Sb, KB_[0], Q0b, Q1b):
        e(l)
    e.label('Lattn_p2loop')
    e(f"""
    s_cmp_lg_u32 s15, 6
    s_cbranch_scc1 Lattn_nosync
    s_waitcnt vmcnt(0)
    s_barrier
    """)
    e.label('Lattn_nosync')
    def block(par):
        Sx = SB[par]; Sy = SB[par ^ 1]
        Knext = KB_[par ^ 1]; Kfree = KB_[par]
        Vcur = VB_[par]; Vprev = VB_[par ^ 1]
        valu = []
        for i in range(16): valu.append(f"v_exp_f32 v{Sx[0]+i}, v{Sx[0]+i}")
        for i in range(8): valu.append(f"v_cvt_pk_bf16_f32 v{Pa+i}, v{Sx[0]+2*i}, v{Sx[0]+2*i+1}")
        for i in range(16): valu.append(f"v_exp_f32 v{Sx[1]+i}, v{Sx[1]+i}")
        for i in range(8): valu.append(f"v_cvt_pk_bf16_f32 v{Pb+i}, v{Sx[1]+2*i}, v{Sx[1]+2*i+1}")
        pvb = pv_mfmas(Ob, Vprev, Pb)
        sa = s_mfmas(Sy[0], Knext, Q0a, Q1a)
        pva = pv_mfmas(Oa, Vcur, Pa)
        sb = s_mfmas(Sy[1], Knext, Q0b, Q1b)
        koff = (2 + par) * QK_TILE
        voff = (1 + par) * V_TILE
        e("s_waitcnt lgkmcnt(0)")
        e(pvb[0])
        e(f"ds_read_b128 {vr(Kfree[0],4)}, v{vT0} offset:{koff}")
        e(f"ds_read_b64 {vr(Kfree[1],2)}, v{vT1} offset:{koff}")
        ins = {5: [pvb[1]], 11: [sa[0]], 17: [sa[1]], 25: ["s_waitcnt vmcnt(2)", pva[0]], 31: [pva[1]], 37: [sb[0]], 43: [sb[1]]}
        for i, v in enumerate(valu):
            e(v)
            if i == 5:
                e(ins[5][0])
                e(f"buffer_load_dwordx4 {vr(Vprev[0],4)}, v{vV}, s[4:7], s18 offen offset:{voff}")
                e(f"buffer_load_dwordx4 {vr(Vprev[1],4)}, v{vV}, s[4:7], s18 offen offset:{voff+672}")
            elif i in ins:
                for l in ins[i]: e(l)
    block(0)
    block(1)
    e(f"""
    v_add_u32 v{vT0}, {2*QK_TILE}, v{vT0}
    v_add_u32 v{vT1}, {2*QK_TILE}, v{vT1}
    s_add_u32 s18, s18, {2*V_TILE}
    s_add_u32 s15, s15, 1
    s_cmp_lt_u32 s15, 16
    s_cbranch_scc1 Lattn_p2loop
    s_nop 1
    """)
    for l in pv_mfmas(Ob, VB_[1], Pb):
        e(l)
    e("""
    s_waitcnt vmcnt(0) lgkmcnt(0)
    s_nop 15
    """)
    stamp(e, 3)
    e(f"""
    v_mov_b32 v{vT2}, 0x5d800000
    v_cmp_nle_f32 vcc, v{Oa+8}, v{vT2}
    v_cmp_nle_f32 s[20:21], v{Ob+8}, v{vT2}
    s_nop 4
    s_or_b64 s[20:21], s[20:21], vcc
    s_cmp_lg_u64 s[20:21], 0
    s_cselect_b32 s22, 1, 0
    s_lshl_b32 s20, s10, 2
    s_add_u32 s20, s20, {ATT_LDS_F}
    v_mov_b32 v{vT0}, s20
    v_mov_b32 v{vT1}, s22
    ds_write_b32 v{vT0}, v{vT1}
    s_waitcnt lgkmcnt(0)
    s_barrier
    v_mov_b32 v{vT0}, {ATT_LDS_F}
    ds_read_b128 {vr(X0,4)}, v{vT0}
    ds_read_b128 {vr(X0+4,4)}, v{vT0} offset:16
    s_waitcnt lgkmcnt(0)
    v_or3_b32 v{vT0}, v{X0}, v{X0+1}, v{X0+2}
    v_or3_b32 v{vT0}, v{vT0}, v{X0+3}, v{X0+4}
    v_or3_b32 v{vT0}, v{vT0}, v{X0+5}, v{X0+6}
    v_or_b32 v{vT0}, v{vT0}, v{X0+7}
    s_nop 1
    v_readfirstlane_b32 s22, v{vT0}
    s_nop 3
    STAMP_A
    s_cmp_eq_u32 s22, 0
    s_cbranch_scc1 Lattn_ok
    s_cmp_eq_u32 s16, 32
    s_cbranch_scc1 Lattn_ok
    s_mov_b32 s16, 32
    s_barrier
    s_branch Lattn_pass1
    """)
    e.label('Lattn_ok')
    e(f"""
    s_lshl_b32 s20, s11, 1            ; qs*2
    s_mul_i32 s20, s20, 3072
    s_add_u32 s20, s20, {ATT_LDS_O}
    v_lshl_add_u32 v{vT0}, v{vLane}, 4, s20
    s_cmp_eq_u32 s12, 0
    s_cbranch_scc1 Lattn_rd
    """)
    for qi, O in enumerate((Oa, Ob)):
        for rq in range(3):
            e(f"ds_write_b128 v{vT0}, {vr(O+4*rq,4)} offset:{qi*3072+rq*1024}")
    e(f"""
    s_waitcnt lgkmcnt(0)
    s_barrier
    s_branch Lattn_fin
    """)
    e.label('Lattn_rd')
    e("s_barrier")
    e("STAMP_B")
    for qi, O in enumerate((Oa, Ob)):
        for rq in range(3):
            e(f"ds_read_b128 {vr(X0+4*rq,4)}, v{vT0} offset:{qi*3072+rq*1024}")
        e("s_waitcnt lgkmcnt(0)")
        for i in range(12):
            e(f"v_add_f32 v{O+i}, v{O+i}, v{X0+i}")
    e(f"""
    s_lshl_b32 s20, s9, 8
    s_lshl_b32 s21, s11, 6
    s_add_u32 s20, s20, s21
    s_mul_i32 s20, s20, 1280
    s_mul_i32 s21, s8, 40
    s_add_u32 s20, s20, s21
    s_add_u32 s20, s20, {OB_OFF}
    v_and_b32 v{vT0}, 31, v{vLane}
    v_mul_u32_u24 v{vT0}, 1280, v{vT0}
    v_lshl_add_u32 v{vT0}, v{vG}, 3, v{vT0}       ; (lane&31)*1280 + g*8
    v_mov_b32 v{vT1}, 0x80000000
    v_cmp_gt_u32 vcc, 32, v{vLane}
    s_nop 1
    v_cndmask_b32 v{vT1}, v{vT1}, v{vT0}, vcc
    """)
    for qi, O in enumerate((Oa, Ob)):
        e(f"""
        v_mov_b32 v{vT2}, v{O+8}
        v_mov_b32 v{vT3}, v{O+8}
        s_nop 1
        v_permlane32_swap_b32 v{vT2}, v{vT3}
        s_nop 1
        v_rcp_f32 v{vT3}, v{vT3}
        s_nop 1
        """)
        for i in range(12):
            e(f"v_mul_f32 v{O+i}, v{O+i}, v{vT3}")
        for i in range(6):
            e(f"v_cvt_pk_bf16_f32 v{X0+i}, v{O+2*i}, v{O+2*i+1}")
        e(f"""
        buffer_store_dwordx2 {vr(X0,2)}, v{vT0}, s[4:7], s20 offen
        buffer_store_dwordx2 {vr(X0+2,2)}, v{vT0}, s[4:7], s20 offen offset:16
        buffer_store_dwordx2 {vr(X0+4,2)}, v{vT1}, s[4:7], s20 offen offset:32
        s_add_u32 s20, s20, {32*1280}
        """)
    e.label('Lattn_fin')
    if INSTR:
        e('''
        s_memtime s[48:49]
        s_memrealtime s[50:51]
        s_load_dwordx2 s[52:53], s[0:1], 32
        s_waitcnt lgkmcnt(0)
        s_mov_b32 s54, 256
        s_mov_b32 s55, 0x00020000
        s_sub_u32 s42, s42, s40
        s_sub_u32 s44, s44, s40
        s_sub_u32 s46, s46, s40
        s_sub_u32 s48, s48, s40
        s_sub_u32 s50, s50, s56
        s_sub_u32 s60, s60, s40
        s_sub_u32 s62, s62, s40
        v_mov_b32 v7, s60
        v_mov_b32 v8, s62
        v_mov_b32 v2, s42
        v_mov_b32 v3, s44
        v_mov_b32 v4, s46
        v_mov_b32 v5, s48
        v_mov_b32 v1, s50
        v_mov_b32 v6, 0
        s_cmp_lg_u32 s2, 5
        s_cbranch_scc1 Lattn_end
        s_lshl_b32 s20, s10, 5
        v_mov_b32 v6, s20
        buffer_store_dwordx4 v[2:5], v6, s[52:55], 0 offen
        buffer_store_dword v1, v6, s[52:55], 0 offen offset:16
        buffer_store_dword v7, v6, s[52:55], 0 offen offset:20
        buffer_store_dword v8, v6, s[52:55], 0 offen offset:24
        ''')
    e.label('Lattn_end')
    e("s_endpgm")

def kd(name, vgpr, sgpr=40):
    return f""".amdhsa_kernel {name}
  .amdhsa_next_free_vgpr {vgpr}
  .amdhsa_next_free_sgpr {sgpr}
  .amdhsa_accum_offset {((vgpr+3)//4)*4}
  .amdhsa_group_segment_fixed_size 0
  .amdhsa_kernarg_size 48
  .amdhsa_user_sgpr_count 2
  .amdhsa_user_sgpr_kernarg_segment_ptr 1
  .amdhsa_system_sgpr_workgroup_id_x 1
.end_amdhsa_kernel
"""

def check_offsets(txt):
    import re
    for ln in txt.split('\n'):
        m = re.search(r'offset:(\d+)', ln)
        if not m: continue
        n = int(m.group(1)); t = ln.strip()
        if t.startswith('buffer_'):
            assert n <= 4095, ln
        elif t.startswith('ds_'):
            assert n <= 65535, ln

def main(which, path):
    from gen_gemm import gen_gemm
    e = E()
    hdr = ''
    kds = ''
    for k in which:
        if k == 'attn':
            hdr += f"; @launch kernel=attn_kernel grid=(256,1,1) block=(512,1,1) lds={ATT_LDS}\n"
            gen_attn(e)
            kds += kd('attn_kernel', 208, 64)
        else:
            name, nv, blk, nwg, lds = gen_gemm(e, k)
            hdr += f"; @launch kernel={name} grid=({nwg},1,1) block=({blk},1,1) lds={lds}\n"
            kds += kd(name, nv, 64)
    out = hdr + '.amdgcn_target "amdgcn-amd-amdhsa--gfx950"\n.text\n'
    out += e.text().replace('STAMP0', 's_memtime s[40:41]\n    s_memrealtime s[56:57]' if INSTR else 's_nop 0').replace('STAMP_A', 's_memtime s[60:61]' if INSTR else 's_nop 0').replace('STAMP_B', 's_memtime s[62:63]' if INSTR else 's_nop 0')
    out += '.section .rodata,"a"\n.p2align 6\n'
    out += kds
    check_offsets(out)
    open(path, 'w').write(out)

if __name__ == '__main__':
    if len(sys.argv) > 3:
        INSTR = True
        import gen_gemm as _gg; _gg.GINSTR = True
    main(sys.argv[1].split(','), sys.argv[2])
```
